```python
import torch

def _softmax(x, axis=-1):
    return torch.softmax(x, dim=axis)
def _gelu(x):
    return torch.nn.functional.gelu(x, approximate="tanh")
def _silu(x):
    return torch.nn.functional.silu(x)
def _sigmoid(x):
    return torch.sigmoid(x)
def _layernorm(x, axis=-1, eps=1e-5):
    m = x.mean(dim=axis, keepdim=True)
    v = x.var(dim=axis, keepdim=True, unbiased=False)
    return (x - m) / torch.sqrt(v + eps)
def _scatter_add(tgt, idx, src, axis=0):
    return tgt.clone().index_add_(axis, idx, src)
def _segment_sum(src, seg, n):
    out = torch.zeros((n,) + src.shape[1:], dtype=src.dtype)
    return out.index_add_(0, seg, src)
def _pad(x, pw):
    flat = tuple(v for pair in reversed(pw) for v in pair)
    return torch.nn.functional.pad(x, flat)

kernel_name = 'standalone__geglu_ffn__sampling'

def setup_inputs():

    _w = (lambda a: (lambda t: t.to(torch.bfloat16) if t.is_floating_point() else t)(torch.as_tensor(a)))
    B, S, D, F = 8, 8, 1024, 3584
    return {
        "x": _w((lambda *s: torch.randn(*s, dtype=torch.bfloat16) * 0.05)(B, S, D)),
        "w_gate": _w((lambda *s: torch.randn(*s, dtype=torch.bfloat16) * 0.05)(D, F)),
        "w_up": _w((lambda *s: torch.randn(*s, dtype=torch.bfloat16) * 0.05)(D, F)),
        "w_down": _w((lambda *s: torch.randn(*s, dtype=torch.bfloat16) * 0.05)(F, D)),
    }

def reference(x, w_gate, w_up, w_down):
    return (_gelu(x @ w_gate) * (x @ w_up)) @ w_down
```

```python
HDR = """; Kernarg layout: x@0 wg@8 wu@16 wd@24 out@32 dbg@40 ws@48
"""
class K:
    def __init__(self, name, grid, block, lds=0):
        self.name=name; self.grid=grid; self.block=block; self.lds=lds
        self.lines=[]; self.vgpr=256; self.sgpr=102; self.accum=None; self.lab=0
    def __call__(self, s):
        for l in s.strip("\n").split("\n"):
            self.lines.append("    "+l.strip())
    def label(self, n): self.lines.append(n+":")
    def newlabel(self, p="L"):
        self.lab+=1; return f"{p}_{self.name}_{self.lab}"
    def text(self):
        return f""".globl {self.name}
.p2align 8
.type {self.name},@function
{self.name}:
""" + "\n".join(self.lines) + "\n"
    def kd(self):
        acc = self.accum if self.accum is not None else min(256,(self.vgpr+3)//4*4)
        return f""".p2align 6
.amdhsa_kernel {self.name}
  .amdhsa_next_free_vgpr {self.vgpr}
  .amdhsa_next_free_sgpr {self.sgpr}
  .amdhsa_accum_offset {acc}
  .amdhsa_group_segment_fixed_size 0
  .amdhsa_kernarg_size 56
  .amdhsa_user_sgpr_count 2
  .amdhsa_user_sgpr_kernarg_segment_ptr 1
  .amdhsa_system_sgpr_workgroup_id_x 1
  .amdhsa_float_denorm_mode_32 3
.end_amdhsa_kernel
"""
def emit(path, kernels, single=False):
    out = HDR
    if single:
        k=kernels[0]
        out += f"; @launch grid=({k.grid},1,1) block=({k.block},1,1) lds={k.lds}\n"
    else:
        for k in kernels:
            out += f"; @launch kernel={k.name} grid=({k.grid},1,1) block=({k.block},1,1) lds={k.lds}\n"
    out += '.amdgcn_target "amdgcn-amd-amdhsa--gfx950"\n.text\n'
    seen=[]
    for k in kernels:
        if k.name in seen: continue
        seen.append(k.name); out += k.text()
    out += '.section .rodata,"a"\n'
    seen=[]
    for k in kernels:
        if k.name in seen: continue
        seen.append(k.name); out += k.kd()
    open(path,"w").write(out)

def stamp_store(k, nst, idx, sreg, sws, vtmp, swg="s2"):
    k(f"""
    s_mul_i32 s96, {swg}, {nst*8}
    s_add_u32 s96, s96, {(128<<20)+idx*8}
    v_mov_b32 v{vtmp}, s96
    v_mov_b32 v{vtmp+2}, s{sreg}
    v_mov_b32 v{vtmp+3}, s{sreg+1}
    s_mov_b64 s[98:99], exec
    s_mov_b64 exec, 1
    global_store_dwordx2 v{vtmp}, v[{vtmp+2}:{vtmp+3}], s[{sws}:{sws+1}]
    s_mov_b64 exec, s[98:99]
    """)
```

```python
from g import *
import sys
HOFF=0
POFF=1<<20

def gelu_mul(k, g, u, t0, t1, sC1, sC2):
    k(f"""
    v_cvt_pk_bf16_f32 v{g}, v{g}, v{u}
    v_and_b32 v{u}, 0xffff0000, v{g}
    v_lshlrev_b32 v{g}, 16, v{g}
    v_mul_f32 v{t0}, v{g}, v{g}
    v_mov_b32 v{t1}, s{sC1}
    v_fma_f32 v{t0}, v{t0}, s{sC2}, v{t1}
    v_mul_f32 v{t0}, v{t0}, v{g}
    v_exp_f32 v{t0}, v{t0}
    s_nop 0
    v_add_f32 v{t0}, 1.0, v{t0}
    v_rcp_f32 v{t0}, v{t0}
    s_nop 0
    v_mul_f32 v{g}, v{g}, v{t0}
    v_cvt_pk_bf16_f32 v{g}, v{g}, v{g}
    v_lshlrev_b32 v{g}, 16, v{g}
    v_mul_f32 v{g}, v{g}, v{u}
    """)
import struct, math
def f2u(f): return struct.unpack("<I",struct.pack("<f",f))[0]
C1=-2*math.sqrt(2/math.pi)*math.log2(math.e); C2=C1*0.044715

def k1():
    k=K("p1_kernel",224,512,lds=65536)
    k(f"""
    s_cmp_ge_u32 s2, 224
    s_cbranch_scc1 L1_end
    s_load_dwordx8 s[4:11], s[0:1], 0
    s_load_dwordx2 s[12:13], s[0:1], 48
    v_lshrrev_b32 v1, 6, v0
    v_and_b32 v2, 63, v0
    s_nop 0
    v_readfirstlane_b32 s14, v1
    s_and_b32 s15, s2, 7
    s_lshr_b32 s16, s2, 3
    s_lshr_b32 s17, s16, 2
    s_mul_i32 s18, s15, 7
    s_add_u32 s17, s17, s18      ; c
    s_and_b32 s18, s16, 3        ; m
    s_mov_b32 s30, 0x05040100
    s_mov_b32 s31, 0x07060302
    s_mov_b32 s32, {f2u(C1)}
    s_mov_b32 s33, {f2u(C2)}
    v_bfe_u32 v3, v2, 3, 1
    v_cmp_eq_u32 vcc, 1, v3
    s_waitcnt lgkmcnt(0)
    v_mov_b32 v6, s6
    v_mov_b32 v7, s7
    v_mov_b32 v8, s8
    v_mov_b32 v9, s9
    v_cndmask_b32 v6, v6, v8, vcc
    v_cndmask_b32 v7, v7, v9, vcc
    v_lshrrev_b32 v4, 4, v2
    v_lshlrev_b32 v4, 3, v4
    s_lshl_b32 s19, s14, 7
    v_add_u32 v4, s19, v4
    v_mul_u32_u24 v4, 7168, v4
    v_and_b32 v5, 7, v2
    v_lshlrev_b32 v5, 4, v5
    v_add_u32 v4, v4, v5
    s_lshl_b32 s19, s17, 7
    v_add_u32 v4, s19, v4
    v_mov_b32 v5, 0
    v_lshl_add_u64 v[6:7], v[4:5], 0, v[6:7]
    s_mov_b32 s25, 0
    v_and_b32 v12, 15, v2
    s_lshl_b32 s19, s18, 4
    v_add_u32 v12, s19, v12
    v_lshlrev_b32 v12, 11, v12
    v_lshrrev_b32 v13, 4, v2
    v_lshlrev_b32 v13, 4, v13
    v_add_u32 v12, v12, v13
    s_lshl_b32 s19, s14, 8
    v_add_u32 v12, s19, v12
    """)
    XF=16; W=32; ACC=160; BF=192
    for ks in range(4):
        k(f"global_load_dwordx4 v[{XF+4*ks}:{XF+4*ks+3}], v12, s[4:5] offset:{ks*64}")
    for ks in range(4):
        for i in range(8):
            d=W+(ks*8+i)*4
            k(f"""
            s_mov_b32 s24, {(ks*32+i)*7168}
            v_lshl_add_u64 v[10:11], v[6:7], 0, s[24:25]
            global_load_dwordx4 v[{d}:{d+3}], v[10:11], off
            """)
    for i in range(32): k(f"v_mov_b32 v{ACC+i}, 0")
    for ks in range(4):
        k(f"s_waitcnt vmcnt({(3-ks)*8})")
        for j in range(8):
            for p in range(4):
                a=W+(ks*8+2*p+1)*4+(j>>1); b=W+(ks*8+2*p)*4+(j>>1)
                k(f"v_perm_b32 v{BF+j*4+p}, v{a}, v{b}, s{30+(j&1)}")
        k("s_nop 1")
        for j in range(8):
            k(f"v_mfma_f32_16x16x32_bf16 v[{ACC+4*j}:{ACC+4*j+3}], v[{XF+4*ks}:{XF+4*ks+3}], v[{BF+4*j}:{BF+4*j+3}], v[{ACC+4*j}:{ACC+4*j+3}]")
    k(f"""
    s_nop 7
    s_nop 1
    v_lshlrev_b32 v3, 4, v2
    s_lshl_b32 s19, s14, 13
    v_add_u32 v4, s19, v3
    """)
    for j in range(8):
        k(f"ds_write_b128 v4, v[{ACC+4*j}:{ACC+4*j+3}] offset:{j*1024}")
    k(f"""
    s_lshl_b32 s19, s14, 10
    v_add_u32 v4, s19, v3
    s_waitcnt lgkmcnt(0)
    s_barrier
    """)
    for w in range(8):
        k(f"ds_read_b128 v[{W+4*w}:{W+4*w+3}], v4 offset:{w*8192}")
    k("s_waitcnt lgkmcnt(0)")
    for w in range(1,8):
        for r in range(4):
            k(f"v_add_f32 v{W+r}, v{W+r}, v{W+4*w+r}")
    k("s_nop 1")
    for r in range(4):
        k(f"v_mov_b32_dpp v{W+4+r}, v{W+r} row_ror:8 row_mask:0xf bank_mask:0xf")
    for r in range(4):
        gelu_mul(k,W+r,W+4+r,W+8,W+9,32,33)
        k(f"v_cvt_pk_bf16_f32 v{W+r}, v{W+r}, v{W+r}")
    k(f"""
    v_lshrrev_b32 v4, 4, v2
    v_lshlrev_b32 v4, 2, v4
    s_lshl_b32 s19, s18, 4
    v_add_u32 v4, s19, v4
    v_mul_u32_u24 v4, 7168, v4
    v_and_b32 v5, 7, v2
    v_lshlrev_b32 v5, 4, v5
    v_add_u32 v4, v4, v5
    s_lshl_b32 s19, s17, 7
    s_lshl_b32 s20, s14, 1
    s_add_u32 s19, s19, s20
    v_add_u32 v4, s19, v4
    v_and_b32 v5, 8, v2
    v_cmp_eq_u32 vcc, 0, v5
    s_and_saveexec_b64 s[22:23], vcc
    """)
    for r in range(4):
        k(f"global_store_short v4, v{W+r}, s[12:13]")
        k(f"v_add_u32 v4, 7168, v4")
    k.label("L1_end")
    k("s_endpgm")
    k.vgpr=224
    return k

def k2():
    k=K("p2_kernel",224,256)
    k(f"""
    s_cmp_ge_u32 s2, 224
    s_cbranch_scc1 L2_end
    s_load_dwordx2 s[10:11], s[0:1], 24
    s_load_dwordx2 s[12:13], s[0:1], 48
    v_lshrrev_b32 v1, 6, v0
    v_and_b32 v2, 63, v0
    s_nop 0
    v_readfirstlane_b32 s14, v1
    s_and_b32 s17, s2, 7      ; nb
    s_lshr_b32 s18, s2, 3     ; s
    s_mov_b32 s30, 0x05040100
    s_mov_b32 s31, 0x07060302
    v_lshrrev_b32 v4, 4, v2
    v_lshlrev_b32 v4, 14, v4
    v_and_b32 v5, 15, v2
    v_lshlrev_b32 v5, 4, v5
    v_add_u32 v4, v4, v5
    s_lshl_b32 s19, s17, 8
    s_lshl_b32 s20, s18, 18
    s_add_u32 s19, s19, s20
    v_add_u32 v4, s19, v4
    v_and_b32 v12, 15, v2
    s_lshl_b32 s19, s14, 4
    v_add_u32 v12, s19, v12
    v_mul_u32_u24 v12, 7168, v12
    v_lshrrev_b32 v13, 4, v2
    v_lshlrev_b32 v13, 4, v13
    v_add_u32 v12, v12, v13
    s_lshl_b32 s19, s18, 8
    v_add_u32 v12, s19, v12
    s_waitcnt lgkmcnt(0)
    """)
    XF=16; W=32; ACC=160; BF=192
    for ks in range(4):
        k(f"global_load_dwordx4 v[{XF+4*ks}:{XF+4*ks+3}], v12, s[12:13] offset:{ks*64}")
    for ks in range(4):
        for i in range(8):
            d=W+(ks*8+i)*4
            k(f"""
            v_add_u32 v10, {(ks*32+i)*2048}, v4
            global_load_dwordx4 v[{d}:{d+3}], v10, s[10:11]
            """)
    for i in range(32): k(f"v_mov_b32 v{ACC+i}, 0")
    for ks in range(4):
        k(f"s_waitcnt vmcnt({(3-ks)*8})")
        for j in range(8):
            for p in range(4):
                a=W+(ks*8+2*p+1)*4+(j>>1); b=W+(ks*8+2*p)*4+(j>>1)
                k(f"v_perm_b32 v{BF+j*4+p}, v{a}, v{b}, s{30+(j&1)}")
        k("s_nop 1")
        for j in range(8):
            k(f"v_mfma_f32_16x16x32_bf16 v[{ACC+4*j}:{ACC+4*j+3}], v[{XF+4*ks}:{XF+4*ks+3}], v[{BF+4*j}:{BF+4*j+3}], v[{ACC+4*j}:{ACC+4*j+3}]")
    k("s_nop 7\ns_nop 1")
    for r in range(4):
        for j in range(8):
            k(f"v_mov_b32 v{W+r*8+j}, v{ACC+4*j+r}")
    k(f"""
    v_lshrrev_b32 v4, 4, v2
    v_lshlrev_b32 v4, 14, v4
    v_and_b32 v5, 15, v2
    v_lshlrev_b32 v5, 5, v5
    v_add_u32 v4, v4, v5
    s_lshl_b32 s19, s18, 18
    s_lshl_b32 s20, s14, 16
    s_add_u32 s19, s19, s20
    s_lshl_b32 s20, s17, 9
    s_add_u32 s19, s19, s20
    s_add_u32 s19, s19, {POFF}
    v_add_u32 v4, s19, v4
    """)
    for r in range(4):
        k(f"global_store_dwordx4 v4, v[{W+r*8}:{W+r*8+3}], s[12:13]")
        k(f"global_store_dwordx4 v4, v[{W+r*8+4}:{W+r*8+7}], s[12:13] offset:16")
        k(f"v_add_u32 v4, 4096, v4")
    k.label("L2_end")
    k("s_endpgm")
    k.vgpr=224
    return k

def k3():
    k=K("p3_kernel",256,64)
    k(f"""
    s_cmp_ge_u32 s2, 256
    s_cbranch_scc1 L3_end
    s_load_dwordx2 s[10:11], s[0:1], 32
    s_load_dwordx2 s[12:13], s[0:1], 48
    s_lshl_b32 s3, s2, 6
    v_add_u32 v1, s3, v0
    v_lshlrev_b32 v2, 4, v1
    v_add_u32 v2, {POFF}, v2
    v_lshlrev_b32 v3, 3, v1
    s_waitcnt lgkmcnt(0)
    """)
    for s in range(28):
        k(f"global_load_dwordx4 v[{8+4*s}:{11+4*s}], v2, s[12:13]")
        k(f"v_add_u32 v2, {1<<18}, v2")
    for s in range(1,28):
        k(f"s_waitcnt vmcnt({27-s})")
        for r in range(4): k(f"v_add_f32 v{8+r}, v{8+r}, v{8+4*s+r}")
    k("""
    v_cvt_pk_bf16_f32 v4, v8, v9
    v_cvt_pk_bf16_f32 v5, v10, v11
    global_store_dwordx2 v3, v[4:5], s[10:11]
    """)
    k.label("L3_end")
    k("s_endpgm")
    k.vgpr=128
    return k
def kempty(name):
    k=K(name,256,64); k("s_endpgm"); k.vgpr=8; return k
if __name__=="__main__":
    import build
    emit("out/v0.s",[k1(),k2(),k3()]); print(build.build("out/v0.s"))
    e=kempty("e_kernel")
    emit("out/v0e.s",[k1(),k2(),k3(),e]); print(build.build("out/v0e.s"))
    emit("out/v0ee.s",[k1(),k2(),k3(),e,e,e]); print(build.build("out/v0ee.s"))
```

```python
from g import *
import struct, math, sys
NAME="standalone__geglu_ffn__sampling_kernel"
def f2u(f): return struct.unpack("<I",struct.pack("<f",f))[0]
C1=-2*math.sqrt(2/math.pi)*math.log2(math.e); C2=C1*0.044715
GUB=5120
PART_OFF=2<<20
EPOCH_OFF=4<<20
ROSTER_OFF=(4<<20)+8192
EW_OFF=(4<<20)+16384
WS_USED=(4<<20)+16384+4096
NDP=18
HOFF=NDP*8192; LDS=HOFF+14336
POLL_MAX=1<<16
R0=104; MAXOUT=12; WPRE=8; WDWIN=8; NX=4; BARFIRST=3
TAGBEG=0; TAGFIN=4; GATH=9; CHK=13; NDIRECT=3
def nib(p): return sum(v<<(4*i) for i,v in enumerate(p))

DOC=f"""
; ---------------------------------------------------------------------------------------------
;
;
; ---------------------------------------------------------------------------------------------
"""

def gen(force_sc1=False, amp=0, xbar=5, stamps=False, swapd=True, ownlds=False, perms=((0,4,1,5,2,6,3),(2,3,6,4,5,0,1),(0,1,2,3,4,5,6),(4,5,6,0,1,2,3))):
    k=K(NAME,256,768,lds=LDS+(1024 if ownlds else 0))
    nj=(1024-R0)//8*2
    nr=(nj+71)//72
    warm=f"""
    s_add_u32 s90, s16, {EPOCH_OFF}
    s_addc_u32 s91, s17, 0
    s_load_dword s92, s[90:91], 0
    s_load_dword s93, s[14:15], 0
    """
    k(f"""
    s_load_dwordx8 s[4:11], s[0:1], 0      ; x, Wg, Wu, Wd
    s_load_dwordx4 s[12:15], s[0:1], 32    ; out, debug
    s_load_dwordx2 s[16:17], s[0:1], 48    ; ws
    {"s_memrealtime s[60:61]" if amp else ""}
    s_cmp_ge_u32 s2, 256
    s_cbranch_scc1 L_end                   ; extra workgroups
    v_lshrrev_b32 v1, 6, v0
    v_and_b32 v2, 63, v0                   ; lane
    s_and_b32 s44, s2, 7                   ; j
    v_readfirstlane_b32 s3, v1             ; wave
    s_lshr_b32 s45, s2, 3                  ; i
    v_lshrrev_b32 v5, 3, v2                ; lane>>3
    v_and_b32 v7, 7, v2                    ; lane&7
    s_mov_b32 s22, {7168*1024}
    s_mov_b32 s23, 0x20000
    s_mov_b32 s26, {131072}
    s_mov_b32 s27, 0x20000
    s_cmp_ge_u32 s3, 4
    s_cbranch_scc1 L_ids
    s_cmp_lt_u32 s45, 14
    s_cbranch_scc1 L_ids
    ; ======== P loader: one dword per 128-B line, 8 rows x 7 lines of Wg or Wu per instruction
    v_mul_u32_u24 v13, 7168, v5
    v_min_u32 v6, 6, v7
    v_lshlrev_b32 v6, 7, v6
    s_mul_i32 s53, s44, 896
    v_add3_u32 v13, v13, v6, s53
    s_mul_i32 s51, s3, 18
    s_add_u32 s51, s51, s45
    s_sub_u32 s51, s51, 14                 ; job = wave*18 + (i-14)
    s_lshr_b32 s52, s51, 1
    s_mul_i32 s52, s52, {8*7168}
    s_add_u32 s52, s52, {R0*7168}
    v_lshlrev_b32 v9, 11, v2
    s_sub_u32 s53, s45, 16
    s_lshl_b32 s53, s53, 7
    s_bitcmp1_b32 s51, 0
    s_waitcnt lgkmcnt(0)
    s_cselect_b32 s20, s8, s6
    s_cselect_b32 s21, s9, s7
    s_mov_b32 s24, s4
    s_mov_b32 s25, s5
    """+warm+f"""
    s_cmp_lg_u32 s3, 0
    s_cbranch_scc1 L_nx
    s_cmp_lt_u32 s45, 16
    s_cbranch_scc1 L_tc
    buffer_load_dword v15, v9, s[24:27], s53 offen     ; x: column chunk i-16 of all 64 rows
    s_branch L_nx
    L_tc:                                  ; i = 14, 15: this kernel's own code and the roster line
    s_getpc_b64 s[18:19]
    L_pc:
    s_sub_u32 s18, s18, L_pc-{NAME}
    s_subb_u32 s19, s19, 0
    v_lshlrev_b32 v9, 7, v2
    s_and_b32 s53, s45, 1
    s_lshl_b32 s53, s53, 13
    v_add_u32 v9, s53, v9
    v_min_u32 v9, L_end-{NAME}, v9
    global_load_dword v15, v9, s[18:19]
    s_lshl_b32 s53, s44, 7
    s_add_u32 s53, s53, {ROSTER_OFF}
    v_mov_b32 v9, s53
    global_load_dword v15, v9, s[16:17]
    L_nx:
    """)
    for r in range(nr):
        if r==1: k("s_barrier")
        k(f"s_add_u32 s58, s52, {r*36*8*7168}\nbuffer_load_dword v15, v13, s[20:23], s58 offen")
    k(f"""
    s_sub_u32 s54, s45, 14
    s_cmp_ge_u32 s45, 30
    s_cbranch_scc1 L_ids
    s_cmp_eq_u32 s3, 3
    s_cbranch_scc1 L_wgo
    s_cmp_lg_u32 s3, 2
    s_cbranch_scc1 L_ids
    s_cmp_ge_u32 s45, 16
    s_cbranch_scc1 L_ids
    s_add_u32 s54, s54, 16
    L_wgo:
    s_mul_i32 s53, s44, {28*GUB}
    s_lshl_b32 s54, s54, 13
    v_lshl_add_u32 v9, v2, 7, s54
    v_min_u32 v9, {28*GUB-128}, v9
    v_add_u32 v9, s53, v9
    global_load_dword v15, v9, s[16:17]
    L_ids:
    s_and_b32 s48, s45, 7
    s_lshl_b32 s53, s48, 2
    s_lshr_b32 s48, 0x51743260, s53
    s_and_b32 s48, s48, 7
    s_lshr_b32 s49, s45, 3
    s_mov_b32 s47, {nib(perms[0])}
    s_cmp_ge_u32 s45, 14
    s_cselect_b32 s47, {nib(perms[1])}, s47
    s_cmp_ge_u32 s45, 16
    s_cselect_b32 s47, {nib(perms[2])}, s47
    s_cmp_ge_u32 s45, 24
    s_cselect_b32 s47, {nib(perms[3])}, s47
    v_lshrrev_b32 v3, 4, v2                ; q = lane>>4
    v_and_b32 v4, 15, v2
    s_cmp_ge_u32 s3, 4
    s_cbranch_scc1 L_compute
    s_lshl_b32 s55, s3, 10
    s_and_b32 s52, s3, 1
    s_cmp_ge_u32 s45, 14
    s_cbranch_scc1 L_ld_P
    s_lshl_b32 s51, s3, 3
    v_add_u32 v5, s51, v5
    v_mul_u32_u24 v10, 7168, v5
    v_and_b32 v6, 1, v3
    s_lshl_b32 s53, s52, 1
    v_or_b32 v6, s53, v6
    v_lshlrev_b32 v6, 1, v6
    v_xor_b32 v6, v6, v7
    v_lshlrev_b32 v6, 4, v6
    s_mul_i32 s53, s44, 7
    s_lshr_b32 s46, s45, 1
    s_add_u32 s53, s53, s46
    s_lshl_b32 s53, s53, 7
    v_add3_u32 v10, v10, v6, s53
    v_bfe_u32 v6, v5, 1, 3
    v_xor_b32 v6, v6, v7
    v_lshlrev_b32 v6, 4, v6
    v_lshlrev_b32 v5, 11, v5
    v_add_u32 v11, v5, v6
    s_bitcmp1_b32 s45, 0
    s_waitcnt lgkmcnt(0)
    s_cselect_b32 s20, s8, s6
    s_cselect_b32 s21, s9, s7
    s_mov_b32 s24, s4
    s_mov_b32 s25, s5
    s_setprio 2
    """)
    st=[]
    for c in range(16): st+=[("W",c,0),("X",c,0),("W",c,1),("X",c,1)]
    n1=len(st)
    st+=[("D",t,0) for t in range(28)]
    page={}; dpage={}; free=list(range(NDP))
    def alloc(it):
        key=(it[0],it[1]) if it[0]!="D" else ("D",it[1]//2)
        sub=it[2] if it[0]!="D" else it[1]&1
        if key not in dpage:
            assert free
            dpage[key]=free.pop(0)
        page[it]=dpage[key]*2+sub
    def wdaddr():
        k(f"""
        s_mov_b32 s28, s10
        s_mov_b32 s29, s11
        s_mov_b32 s30, {7168*1024}
        s_mov_b32 s31, 0x20000
        s_lshl_b32 s53, s52, 2
        v_add_u32 v5, s53, v3
        v_lshlrev_b32 v5, 1, v5
        v_xor_b32 v6, v5, v4
        v_lshlrev_b32 v6, 4, v6
        s_mul_i32 s53, s44, 448
        s_lshl_b32 s54, s3, 2
        s_add_u32 s53, s53, s54
        v_add_u32 v5, s53, v3
        v_lshlrev_b32 v5, 11, v5
        s_lshl_b32 s53, s48, 8
        v_add3_u32 v12, v5, v6, s53
        """)
    def emit_item(it):
        pg=page[it]*4096
        if it[0]=="W": k(f"s_add_u32 m0, s55, {pg}\ns_mov_b32 s58, {(it[1]*64+it[2]*32)*7168}\nbuffer_load_dwordx4 v10, s[20:23], s58 offen lds")
        elif it[0]=="X": k(f"s_add_u32 m0, s55, {pg}\ns_mov_b32 s58, {it[1]*128+it[2]*32*2048}\nbuffer_load_dwordx4 v11, s[24:27], s58 offen lds")
        else:
            t=it[1]
            if t%4==0: k(f"s_bfe_u32 s59, s47, {(4<<16)|t}\ns_add_u32 m0, s55, {pg}\ns_lshl_b32 s59, s59, 17")
            else: k(f"s_add_u32 m0, s55, {pg}\ns_add_u32 s59, s59, {16*2048}")
            k("buffer_load_dwordx4 v12, s[28:31], s59 offen lds")
    issued=0
    def issue_to(n):
        nonlocal issued
        while issued<n:
            alloc(st[issued]); emit_item(st[issued]); issued+=1
    def release(c): free.append(dpage[("W",c)]); free.append(dpage[("X",c)])
    lim=n1+WPRE
    lag=2 if xbar else 1
    issue_to(1); k(warm); issue_to(MAXOUT+1)
    wdaddr()
    for c in range(16):
        landed=4*(c+1)
        k(f"s_waitcnt vmcnt({issued-landed})")
        if c>=16-BARFIRST:
            k("s_barrier"); release(c-lag); issue_to(min(landed+MAXOUT,lim))
        else:
            issue_to(min(landed+MAXOUT,lim)); k("s_barrier")
            if c>=lag: release(c-lag)
    assert issued==lim
    while issued<len(st):
        k(f"s_waitcnt vmcnt({WDWIN-1})")
        issue_to(issued+1)
    k(f"""
    L_ld_a1:
    s_waitcnt vmcnt({28-4*NX})
    s_barrier
    s_waitcnt vmcnt(0)
    s_barrier
    s_endpgm
    L_ld_P:
    """)
    wdaddr()
    for t in range(28): emit_item(("D",t,0))
    k("s_branch L_ld_a1")
    k(f"""
    L_compute:
    s_sub_u32 s3, s3, 4                    ; cw 0..7
    s_and_b32 s50, s3, 1
    s_lshr_b32 s46, s3, 2
    s_lshl_b32 s51, s50, 1
    s_add_u32 s51, s51, s46
    s_bfe_u32 s52, s3, 0x10001
    v_lshrrev_b32 v5, 2, v4
    v_and_b32 v6, 3, v2
    v_lshlrev_b32 v14, 4, v2               ; lane*16
    v_lshlrev_b32 v16, 2, v2               ; lane*4
    v_mov_b32 v15, 0
    s_mov_b32 s59, {EPOCH_OFF}
    s_mov_b32 s34, {WS_USED}
    s_mov_b32 s35, 0x20000
    s_mov_b32 s42, 256
    s_mov_b32 s43, 0x20000
    s_mov_b32 s38, 131072
    s_mov_b32 s39, 0x20000
    s_waitcnt lgkmcnt(0)
    s_mov_b32 s32, s16
    s_mov_b32 s33, s17
    s_mov_b32 s40, s14
    s_mov_b32 s41, s15
    s_add_u32 s90, s16, s59
    s_addc_u32 s91, s17, 0
    s_load_dword s87, s[90:91], 0          ; epoch
    s_mov_b32 s36, s12
    s_mov_b32 s37, s13
    s_lshl_b32 s53, s44, 2
    s_add_u32 s53, s53, s51
    s_mul_i32 s53, s53, 7
    s_lshr_b32 s54, s45, 1
    s_add_u32 s53, s53, s54
    s_mul_i32 s53, s53, {GUB}
    s_and_b32 s54, s45, 1
    s_lshl_b32 s54, s54, 1
    s_add_u32 s54, s54, s52
    s_lshl_b32 s80, s54, 10
    s_add_u32 s80, s80, s53
    s_lshl_b32 s83, s54, 8
    s_add_u32 s83, s83, s53
    s_add_u32 s83, s83, 4096
    s_lshl_b32 s53, s3, 2
    s_lshr_b32 s53, s47, s53
    s_and_b32 s53, s53, 7
    s_lshl_b32 s54, s44, 2
    s_add_u32 s54, s54, s49
    s_mul_i32 s54, s54, 7
    s_add_u32 s53, s53, s54
    s_mul_i32 s81, s53, {GUB}
    s_add_u32 s82, s81, 4096
    v_lshlrev_b32 v9, 4, v4
    v_lshl_add_u32 v35, v3, 10, v9
    v_add_u32 v35, 12, v35
    s_lshl_b32 s53, s49, 3
    s_add_u32 s53, s53, s48
    s_lshl_b32 s98, s53, 7
    s_add_u32 s98, s98, {EW_OFF}
    s_add_u32 s28, s16, s98
    s_addc_u32 s29, s17, 0
    s_lshl_b32 s53, s53, 16
    s_add_u32 s53, s53, {PART_OFF}
    s_lshl_b32 s54, s44, 13
    s_add_u32 s57, s53, s54
    s_add_u32 s89, s57, 4096
    s_lshl_b32 s54, s46, 15
    s_add_u32 s53, s53, s54
    s_lshl_b32 s54, s44, 10
    s_add_u32 s53, s53, s54
    s_and_b32 s54, s3, 3
    s_lshl_b32 s54, s54, 8
    s_add_u32 s58, s53, s54
    v_lshlrev_b32 v18, 13, v3
    v_lshl_add_u32 v18, v4, 4, v18
    s_lshl_b32 s53, s44, 2
    v_mov_b32 v19, s53
    s_lshl_b32 s53, s49, 4
    s_and_b32 s54, s44, 3
    s_lshl_b32 s54, s54, 2
    s_add_u32 s53, s53, s54
    s_lshl_b32 s86, s53, 11
    s_lshl_b32 s53, s48, 8
    s_add_u32 s86, s86, s53
    s_lshr_b32 s54, s44, 2
    s_lshl_b32 s54, s54, 7
    s_add_u32 s86, s86, s54
    s_add_u32 s85, s86, 4096               ;              rows 2,3
    v_lshlrev_b32 v13, 1, v2
    """)
    if ownlds:
        k(f"""
        s_and_b32 s53, s44, 3
        s_lshl_b32 s53, s53, 4
        s_mov_b64 s[96:97], 0xffff
        s_lshl_b64 s[96:97], s[96:97], s53
        s_lshr_b32 s53, s44, 2
        s_cmp_eq_u32 s53, s46
        s_cselect_b64 s[96:97], s[96:97], 0
        s_not_b64 s[94:95], s[96:97]
        s_and_b32 s53, s3, 3
        s_lshl_b32 s53, s53, 8
        s_add_u32 s53, s53, {HOFF+14336}
        v_lshl_add_u32 v32, v4, 4, s53
        v_add_u32 v33, {HOFF+14336}, v14
        """)
        for t in range(1,8):
            k(f"s_add_u32 s53, s44, {t}\ns_and_b32 s53, s53, 7\ns_lshl_b32 s53, s53, 10\ns_add_u32 s{69+t}, s57, s53")
    k(f"""
    v_lshl_add_u32 v7, v3, 2, v5
    v_and_b32 v9, 7, v7
    v_xor_b32 v9, s3, v9
    v_lshlrev_b32 v9, 5, v9
    v_lshlrev_b32 v7, 8, v7
    v_lshl_add_u32 v24, v6, 3, v7
    v_add_u32 v24, v24, v9
    v_add_u32 v25, 0x10000, v24
    v_add_u32 v26, 0x20000, v24
    s_lshl_b32 s53, s3, 11
    s_add_u32 s53, s53, {HOFF}
    v_add_u32 v27, s53, v14
    v_add_u32 v28, {HOFF}, v14
    v_lshl_add_u32 v7, v3, 3, v5
    v_lshlrev_b32 v7, 7, v7
    v_lshl_add_u32 v136, v6, 3, v7
    v_lshrrev_b32 v7, 1, v5
    v_and_b32 v9, 1, v3
    v_lshl_or_b32 v7, v9, 1, v7
    s_lshl_b32 s53, s52, 1
    v_xor_b32 v7, s53, v7
    v_lshl_add_u32 v136, v7, 5, v136
    v_add_u32 v137, 0x10000, v136
    v_add_u32 v138, 0x20000, v136
    v_xor_b32 v139, 32, v136
    v_add_u32 v140, 0x10000, v139
    v_add_u32 v141, 0x20000, v139
    v_lshrrev_b32 v7, 1, v4
    v_xor_b32 v7, v3, v7
    v_lshlrev_b32 v7, 4, v7
    s_lshl_b32 s53, s51, 11
    v_lshl_add_u32 v142, v4, 7, s53
    v_add_u32 v142, v142, v7
    v_add_u32 v143, 0x10000, v142
    v_add_u32 v144, 0x20000, v142
    v_xor_b32 v145, 64, v142
    v_add_u32 v146, 0x10000, v145
    v_add_u32 v147, 0x20000, v145
    s_getreg_b32 s100, hwreg(HW_REG_XCC_ID, 0, 16)
    s_lshl_b32 s100, s100, 16
    s_lshl_b32 s101, s44, 7
    s_add_u32 s101, s101, {ROSTER_OFF}
    s_lshl_b32 s53, s45, 2
    v_mov_b32 v23, s53
    v_and_b32 v22, 31, v2
    v_lshlrev_b32 v22, 2, v22
    s_cmp_ge_u32 s45, 14
    s_cbranch_scc1 L_c_P
    s_mov_b32 s53, {f2u(C1)}               ; -2*sqrt(2/pi)*log2(e)
    s_mov_b32 s54, {f2u(C2)}               ; ... * 0.044715
    v_mov_b32 v8, s53
    v_mov_b32 v9, s53
    v_mov_b32 v30, s54
    v_mov_b32 v31, s54
    """)
    def tagbeg(sfx):
        k(f"""
        s_waitcnt lgkmcnt(0)
        s_mov_b64 exec, 1
        buffer_load_dword v21, v15, s[40:43], 0 offen sc1
        s_add_u32 s87, s87, 1
        s_and_b32 s87, s87, 0xffff
        s_cmp_lg_u32 s3, 0
        s_cbranch_scc1 L_noros{sfx}
        s_or_b32 s55, s100, s87
        v_mov_b32 v29, s55
        buffer_store_dword v29, v23, s[32:35], s101 offen
        L_noros{sfx}:
        s_mov_b64 exec, -1
        """)
    def tagfin(sfx):
        k(f"""
        s_waitcnt vmcnt(0)
        v_readfirstlane_b32 s55, v21
        s_nop 1
        s_cmp_lg_u32 s55, 0
        s_cselect_b32 s55, s55, s87
        s_and_b32 s55, s55, 0xffff
        s_or_b32 s100, s100, s55
        s_cmp_eq_u32 s55, s87
        s_cbranch_scc1 L_rok{sfx}
        s_cmp_lg_u32 s3, 0
        s_cbranch_scc1 L_rok{sfx}
        s_mov_b64 exec, 1
        v_mov_b32 v29, s100
        buffer_store_dword v29, v23, s[32:35], s101 offen
        s_mov_b64 exec, -1
        L_rok{sfx}:
        s_mov_b32 s87, s55
        s_and_b32 s88, s87, 0xff
        """)
    def bufs(c): b=c&1; return 40+24*b, 56+24*b
    def mf4(c, waits=None):
        d,x=bufs(c)
        ops=[(36,d,x),(148,d+4,x),(36,d+8,x+4),(148,d+12,x+4)]
        for n,(A,a,b) in enumerate(ops):
            if waits and waits[n] is not None: k(f"s_waitcnt lgkmcnt({waits[n]})")
            cc="0" if (c==0 and n<2) else f"v[{A}:{A+3}]"
            k(f"v_mfma_f32_16x16x32_bf16 v[{A}:{A+3}], v[{a}:{a+3}], v[{b}:{b+3}], {cc}")
    for c in range(16):
        off=dpage[("W",c)]*8192; seg=off>>16; off&=0xffff
        xo=dpage[("X",c)]*8192; xs=xo>>16; xo&=0xffff
        d,x=bufs(c)
        k("s_barrier")
        if c==15: k("s_setprio 3")
        for h in range(2):
            o=off+4096*h
            k(f"""
            ds_read_b64_tr_b16 v[{d+8*h}:{d+8*h+1}], v{136+seg} offset:{o}
            ds_read_b64_tr_b16 v[{d+8*h+2}:{d+8*h+3}], v{136+seg} offset:{o+512}
            ds_read_b128 v[{x+4*h}:{x+4*h+3}], v{142+3*h+xs} offset:{xo}
            ds_read_b64_tr_b16 v[{d+8*h+4}:{d+8*h+5}], v{139+seg} offset:{o}
            ds_read_b64_tr_b16 v[{d+8*h+6}:{d+8*h+7}], v{139+seg} offset:{o+512}
            """)
        if c>=1: mf4(c-1,(None,None,10,None) if xbar else None)
        if c==TAGBEG: tagbeg("")
        if c==TAGFIN: tagfin("")
        if c==GATH: k("buffer_load_dword v34, v22, s[32:35], s101 offen sc1")
        if c==CHK: k("s_waitcnt vmcnt(0)\nv_cmp_ne_u32 s[18:19], s100, v34")
        if c<15: k(f"s_waitcnt lgkmcnt({xbar})")
    mf4(15,(7,5,2,0))
    k("""
    s_bitcmp1_b32 s45, 0
    s_nop 4
    s_cbranch_scc1 L_st_up
    """)
    src=[36,37,38,39,148,149,150,151]
    for r in range(8): k(f"v_cvt_pk_bf16_f32 v{44+r}, 0, v{src[r]}")
    for r in range(4): k(f"v_pk_mul_f32 v[{52+2*r}:{53+2*r}], v[{44+2*r}:{45+2*r}], v[{44+2*r}:{45+2*r}]")
    for r in range(4): k(f"v_pk_fma_f32 v[{52+2*r}:{53+2*r}], v[{52+2*r}:{53+2*r}], v[30:31], v[8:9]")
    for r in range(4): k(f"v_pk_mul_f32 v[{52+2*r}:{53+2*r}], v[{52+2*r}:{53+2*r}], v[{44+2*r}:{45+2*r}]")
    for r in range(8): k(f"v_exp_f32 v{52+r}, v{52+r}")
    for r in range(4): k(f"v_pk_add_f32 v[{52+2*r}:{53+2*r}], v[{52+2*r}:{53+2*r}], 1.0 op_sel_hi:[1,0]")
    for r in range(8): k(f"v_rcp_f32 v{52+r}, v{52+r}")
    k(f"""
    v_pk_mul_f32 v[36:37], v[44:45], v[52:53]
    v_pk_mul_f32 v[38:39], v[46:47], v[54:55]
    v_pk_mul_f32 v[148:149], v[48:49], v[56:57]
    v_pk_mul_f32 v[150:151], v[50:51], v[58:59]
    L_st_up:
    v_cvt_pk_bf16_f32 v44, v36, v37
    v_cvt_pk_bf16_f32 v45, v38, v39
    v_cvt_pk_bf16_f32 v46, v148, v149
    v_cvt_pk_bf16_f32 v47, 0, v150
    v_cvt_pk_bf16_f32 v48, 0, v151
    v_or_b32 v47, s87, v47
    v_or_b32 v48, s87, v48
    s_cmp_eq_u64 s[18:19], 0
    s_cbranch_scc1 L_st_plain
    buffer_store_dwordx4 v[44:47], v14, s[32:35], s80 offen sc1
    buffer_store_dword v48, v16, s[32:35], s83 offen sc1
    s_branch L_p2
    L_st_plain:                            ; the whole group shares this L2
    buffer_store_dwordx4 v[44:47], v14, s[32:35], s80 offen {"sc1" if force_sc1 else ""}
    buffer_store_dword v48, v16, s[32:35], s83 offen {"sc1" if force_sc1 else ""}
    s_branch L_p2
    L_c_P:
    """)
    tagbeg("n")
    k("s_barrier")
    tagfin("n")
    k(f"""
    s_add_u32 s53, s2, s3
    s_cmp_lg_u32 s53, {255+7}
    s_cbranch_scc1 L_npb
    s_mov_b64 exec, 1
    v_mov_b32 v20, s87
    v_or_b32 v21, 0x10000, v20
    buffer_store_dword v21, v15, s[40:43], 0 offen sc1
    s_waitcnt vmcnt(0)
    buffer_store_dword v20, v15, s[32:35], s59 offen sc1
    s_mov_b64 exec, -1
    L_npb:
    s_setprio 3
    ; ---- phase 2
    L_p2:
    s_mov_b32 s56, 0
    s_barrier                              ; A1
    s_cmp_eq_u32 s3, 7
    s_cbranch_scc1 L_w7
    """)
    WD=80
    def wd_read(cb):
        for u in range(4):
            base=page[("D",cb*4+u,0)]*4096
            d=WD+cb*8+2*u
            k(f"ds_read_b64_tr_b16 v[{d}:{d+1}], v{24+(base>>16)} offset:{base&0xffff}")
    def poll_issue():
        for f in (0,2,1,3):
            k(f"buffer_load_dwordx4 v[{60+4*f}:{63+4*f}], v14, s[32:35], s81 offen offset:{f*1024} sc1")
            k(f"buffer_load_dword v{76+f}, v16, s[32:35], s82 offen offset:{f*256} sc1")
    poll_issue()
    k("L_w7:")
    for cb in range(NX):
        if cb>=3: k("s_waitcnt lgkmcnt(8)")
        wd_read(cb)
    k("s_waitcnt lgkmcnt(0)\ns_barrier                              ; A2")
    for cb in range(NX,7): wd_read(cb)
    k("""
    s_cmp_eq_u32 s3, 7
    s_cbranch_scc1 L_hdone
    L_chk:                                 ; h = bf16(gelu(g) * u); v7 collects tag mismatches
    """)
    def half(p):
        g=60+4*p; u=68+4*p; ge=76+p; ue=78+p
        for (sr,ex,dst) in ((g,ge,40),(u,ue,48)):
            for t in range(3):
                k(f"v_lshlrev_b32 v{dst+2*t}, 16, v{sr+t}\nv_and_b32 v{dst+2*t+1}, 0xffff0000, v{sr+t}")
            k(f"v_xor_b32 v{dst+6}, s87, v{sr+3}\nv_xor_b32 v{dst+7}, s87, v{ex}")
        if p==0: k("v_or3_b32 v7, v46, v47, v54\nv_or_b32 v7, v7, v55")
        else: k("v_or3_b32 v7, v7, v46, v47\nv_or3_b32 v7, v7, v54, v55")
        for t in range(4): k(f"v_pk_mul_f32 v[{40+2*t}:{41+2*t}], v[{40+2*t}:{41+2*t}], v[{48+2*t}:{49+2*t}]")
        o=56 if p==0 else 152
        for t in range(4): k(f"v_cvt_pk_bf16_f32 v{o+t}, v{40+2*t}, v{41+2*t}")
        k(f"ds_write_b128 v27, v[{o}:{o+3}] offset:{1024*p}")
    k("s_waitcnt vmcnt(4)"); half(0)
    k("s_waitcnt vmcnt(0)"); half(1)
    k(f"""
    v_and_b32 v7, 0xffff, v7
    v_cmp_ne_u32 vcc, 0, v7
    s_add_u32 s56, s56, 1
    s_cmp_gt_u32 s56, {POLL_MAX}
    s_cbranch_scc1 L_hdone
    s_cbranch_vccz L_hdone
    s_cmp_le_u32 s56, {NDIRECT}
    s_cbranch_scc1 L_full
    L_hint:
    buffer_load_dword v17, v35, s[32:35], s81 offen sc1
    s_add_u32 s56, s56, 1
    s_cmp_gt_u32 s56, {POLL_MAX}
    s_cbranch_scc1 L_full
    s_waitcnt vmcnt(0)
    v_and_b32 v17, 0xffff, v17
    v_cmp_ne_u32 vcc, s87, v17
    s_cbranch_vccz L_full
    s_sleep 1
    s_branch L_hint
    L_full:
    s_waitcnt lgkmcnt(0)
    """)
    poll_issue()
    k("""
    s_branch L_chk
    L_hdone:
    s_waitcnt lgkmcnt(0)
    s_barrier
    s_cmp_lg_u32 s3, 7
    s_cbranch_scc1 L_nf
    v_mov_b32 v20, s87
    s_mov_b64 exec, 1
    buffer_store_dword v20, v19, s[32:35], s98 offen sc1
    s_mov_b64 exec, -1
    L_nf:
    """)
    hreg=[40+4*i for i in range(10)]+[136+4*i for i in range(4)]
    for i in range(14): k(f"ds_read_b128 v[{hreg[i]}:{hreg[i]+3}], v28 offset:{i*1024}")
    for i in range(14):
        k(f"s_waitcnt lgkmcnt({13-i})")
        cc="0" if i==0 else "v[36:39]"
        if swapd: k(f"v_mfma_f32_16x16x32_bf16 v[36:39], v[{hreg[i]}:{hreg[i]+3}], v[{WD+4*i}:{WD+4*i+3}], {cc}")
        else: k(f"v_mfma_f32_16x16x32_bf16 v[36:39], v[{WD+4*i}:{WD+4*i+3}], v[{hreg[i]}:{hreg[i]+3}], {cc}")
    k(f"""
    s_cmp_lg_u32 s3, 7
    s_movk_i32 s53, 0xff00
    v_mov_b32 v21, s88
    s_nop 5
    {"s_mov_b64 exec, s[94:95]" if ownlds else ""}
    v_and_or_b32 v36, v36, s53, v21
    buffer_store_dwordx4 v[36:39], v18, s[32:35], s58 offen sc1
    {"s_mov_b64 exec, s[96:97]" if ownlds else ""}
    {"ds_write_b128 v32, v[36:39]" if ownlds else ""}
    {"s_mov_b64 exec, -1" if ownlds else ""}
    {"s_waitcnt lgkmcnt(0)" if ownlds else ""}
    {"s_barrier" if ownlds else ""}
    s_cbranch_scc1 L_end
    {"ds_read_b128 v[36:39], v33" if ownlds else ""}
    s_mov_b32 s56, 0
    L_fpoll:
    s_load_dwordx8 s[4:11], s[28:29], 0 glc
    s_add_u32 s56, s56, 1
    s_cmp_gt_u32 s56, {POLL_MAX}
    s_waitcnt lgkmcnt(0)
    s_cbranch_scc1 L_rloop
    s_and_b64 s[20:21], s[4:5], s[6:7]
    s_or_b64 s[22:23], s[4:5], s[6:7]
    s_and_b64 s[20:21], s[20:21], s[8:9]
    s_or_b64 s[22:23], s[22:23], s[8:9]
    s_and_b64 s[20:21], s[20:21], s[10:11]
    s_or_b64 s[22:23], s[22:23], s[10:11]
    s_and_b32 s20, s20, s21
    s_or_b32 s22, s22, s23
    s_xor_b32 s20, s20, s87
    s_xor_b32 s22, s22, s87
    s_or_b32 s20, s20, s22
    s_cbranch_scc1 L_fpoll
    s_mov_b32 s56, 0
    L_rloop:
    """)
    NS_=7 if ownlds else 8
    for t in range(NS_):
        d=40+4*t
        if ownlds: k(f"buffer_load_dwordx4 v[{d}:{d+3}], v14, s[32:35], s{70+t} offen sc1")
        else: k(f"buffer_load_dwordx4 v[{d}:{d+3}], v14, s[32:35], {'s57' if t<4 else 's89'} offen offset:{(t&3)*1024} sc1")
    k("v_mov_b32 v9, 0")
    for t in range(NS_):
        d=40+4*t
        k(f"s_waitcnt vmcnt({NS_-1-t})\nv_xor_b32 v{d}, s88, v{d}\nv_or_b32 v9, v9, v{d}")
        if ownlds and t==0: k("v_pk_add_f32 v[76:77], v[36:37], v[40:41]\nv_pk_add_f32 v[78:79], v[38:39], v[42:43]")
        elif t==1 and not ownlds: k("v_pk_add_f32 v[76:77], v[40:41], v[44:45]\nv_pk_add_f32 v[78:79], v[42:43], v[46:47]")
        elif t>=1: k(f"v_pk_add_f32 v[76:77], v[76:77], v[{d}:{d+1}]\nv_pk_add_f32 v[78:79], v[78:79], v[{d+2}:{d+3}]")
    k(f"""
    v_and_b32 v9, 0xff, v9
    v_cmp_ne_u32 vcc, 0, v9
    v_cvt_pk_bf16_f32 v74, v76, v77
    v_cvt_pk_bf16_f32 v75, v78, v79
    s_add_u32 s56, s56, 1
    s_cmp_gt_u32 s56, {2*POLL_MAX}
    s_cbranch_scc1 L_rgot
    s_cbranch_vccnz L_rloop
    L_rgot:
    """)
    if swapd:
        k("""
        buffer_store_short v74, v13, s[36:39], s86 offen
        buffer_store_short_d16_hi v74, v13, s[36:39], s86 offen offset:2048
        buffer_store_short v75, v13, s[36:39], s85 offen
        buffer_store_short_d16_hi v75, v13, s[36:39], s85 offen offset:2048
        """)
    else: k("buffer_store_dwordx2 v[74:75], v13, s[36:39], s86 offen")
    if amp:
        k(f"""
        s_memrealtime s[62:63]
        s_waitcnt lgkmcnt(0)
        s_sub_u32 s64, s62, s60
        s_min_u32 s64, s64, 5000
        s_mul_i32 s64, s64, {amp}
        s_add_u32 s64, s64, s62
        L_amp:
        s_memrealtime s[66:67]
        s_waitcnt lgkmcnt(0)
        s_sub_u32 s68, s66, s64
        s_cmp_lt_i32 s68, 0
        s_cbranch_scc1 L_amp
        """)
    k.label("L_end")
    k("s_endpgm")
    k.lines=[l for l in k.lines if l.strip()]
    k.vgpr=156
    return k
def write(path,k):
    emit(path,[k])
    s=open(path).read()
    s=s.replace('.text\n', DOC.lstrip("\n")+'.text\n',1)
    open(path,"w").write(s)
if __name__=="__main__":
    import build
    write("out/fin.s",gen()); print(build.build("out/fin.s"))
    write("out/fin_sc1.s",gen(force_sc1=True)); print(build.build("out/fin_sc1.s"))
    write("out/fin_amp.s",gen(amp=10)); print(build.build("out/fin_amp.s"))
```
